```python
import torch

def _softmax(x, axis=-1):
    return torch.softmax(x, dim=axis)
def _gelu(x):
    return torch.nn.functional.gelu(x, approximate="tanh")
def _silu(x):
    return torch.nn.functional.silu(x)
def _sigmoid(x):
    return torch.sigmoid(x)
def _layernorm(x, axis=-1, eps=1e-5):
    m = x.mean(dim=axis, keepdim=True)
    v = x.var(dim=axis, keepdim=True, unbiased=False)
    return (x - m) / torch.sqrt(v + eps)
def _scatter_add(tgt, idx, src, axis=0):
    return tgt.clone().index_add_(axis, idx, src)
def _segment_sum(src, seg, n):
    out = torch.zeros((n,) + src.shape[1:], dtype=src.dtype)
    return out.index_add_(0, seg, src)
def _pad(x, pw):
    flat = tuple(v for pair in reversed(pw) for v in pair)
    return torch.nn.functional.pad(x, flat)

kernel_name = 'gated_mix__sliding_local_dilated__grouped_kv_mqa__prompt'

def setup_inputs():

    _w = (lambda a: (lambda t: t.to(torch.bfloat16) if t.is_floating_point() else t)(torch.as_tensor(a)))
    def _A_setup():
        B, S, D = 1, 2048, 640
        return {
            "x": _w((lambda *s: torch.randn(*s, dtype=torch.bfloat16) * 0.05)(B, S, D)),
            "wqkv": _w((lambda *s: torch.randn(*s, dtype=torch.bfloat16) * 0.8)(D, 3 * D)),
            "wo": _w((lambda *s: torch.randn(*s, dtype=torch.bfloat16) * 0.05)(D, D)),
        }
    _A_in = _A_setup()

    def _B_setup():
        B, S, D, H = 1, 2048, 640, 32
        Dh = D // H
        return {
            "x": _w((lambda *s: torch.randn(*s, dtype=torch.bfloat16) * 0.05)(B, S, D)),
            "wq": _w((lambda *s: torch.randn(*s, dtype=torch.bfloat16) * 1.6)(D, H * Dh)),
            "wk": _w((lambda *s: torch.randn(*s, dtype=torch.bfloat16) * 1.6)(D, Dh)),
            "wv": _w((lambda *s: torch.randn(*s, dtype=torch.bfloat16) * 0.2)(D, Dh)),
            "wo": _w((lambda *s: torch.randn(*s, dtype=torch.bfloat16) * 0.2)(H * Dh, D)),
        }
    _B_in = _B_setup()

    return {
        "A_x": _A_in["x"],
        "A_wqkv": _A_in["wqkv"],
        "A_wo": _A_in["wo"],
        "B_x": _B_in["x"],
        "B_wq": _B_in["wq"],
        "B_wk": _B_in["wk"],
        "B_wv": _B_in["wv"],
        "B_wo": _B_in["wo"],
        "gate_w": _w((lambda *s: torch.randn(*s, dtype=torch.bfloat16) * 0.05)(640) * 16.0),
    }

def reference(A_x, A_wqkv, A_wo, B_x, B_wq, B_wk, B_wv, B_wo, gate_w):
    def _A_ref(x, wqkv, wo):
        B, S, D = x.shape
        H = 32; Dh = D // H
        W, dil = 8, 2
        qkv = (lambda x, *d: x.permute(*d))((x @ wqkv).reshape(B, S, 3, H, Dh), 2, 0, 3, 1, 4)
        q, k, v = qkv[0], qkv[1], qkv[2]
        scale = Dh ** -0.5
        pos = torch.arange(S)
        off = torch.arange(W) * dil
        idx = pos[:, None] - off[None, :]
        mask = idx >= 0
        idx_c = torch.where(mask, idx, 0).reshape(-1)
        kg = k[:, :, idx_c, :].reshape(B, H, S, W, Dh)
        vg = v[:, :, idx_c, :].reshape(B, H, S, W, Dh)
        logits = torch.einsum("bhsd,bhswd->bhsw", q, kg) * scale
        logits = torch.where(mask[None, None, :, :], logits, -1e9)
        attn = _softmax(logits, axis=-1)
        o = torch.einsum("bhsw,bhswd->bhsd", attn, vg)
        return (lambda x, *d: x.permute(*d))(o, 0, 2, 1, 3).reshape(B, S, D) @ wo

    def _B_ref(x, wq, wk, wv, wo):
        B, S, D = x.shape
        H = 32
        Dh = D // H
        q = (lambda x, *d: x.permute(*d))((x @ wq).reshape(B, S, H, Dh), 0, 2, 1, 3)
        k = x @ wk
        v = x @ wv
        scores = torch.einsum("bhqd,bkd->bhqk", q, k) * (Dh ** -0.5)
        p = _softmax(scores, axis=-1)
        o = torch.einsum("bhqk,bkd->bhqd", p, v)
        return (lambda x, *d: x.permute(*d))(o, 0, 2, 1, 3).reshape(B, S, H * Dh) @ wo

    x = A_x
    g = _sigmoid((x * gate_w).sum(-1, keepdims=True))
    a = _A_ref(x, A_wqkv, A_wo)
    b = _B_ref(x, B_wq, B_wk, B_wv, B_wo)
    return g * a + (1 - g) * b
```

```python
import math

NAME = "gated_mix__sliding_local_dilated__grouped_kv_mqa__prompt"

KA_X, KA_WQKV, KA_WOA, KA_BX, KA_WQ, KA_WK, KA_WV, KA_WOB, KA_GW, KA_OUT, KA_DBG, KA_WS = [8 * i for i in range(12)]

WS_QB = 0x0000000
WS_QA = 0x0280000
WS_KA = 0x0500000
WS_VA = 0x0780000
WS_OF = 0x0A00000
WS_WOP = 0x0F00000
WS_KVB = 0x1100000
WS_G = 0x1140000
WS_STAMP = 0x1200000
WS_SIZE = 0x1400000

SLAB = 13312
KVB_BYTES = 16 * SLAB

CSCALE = math.log2(math.e) / math.sqrt(20.0)

import struct
def f32bits(x):
    return struct.unpack("<I", struct.pack("<f", x))[0]

class Asm:
    def __init__(self):
        self.lines = []
        self.nlabel = 0
    def __call__(self, s):
        for l in s.strip("\n").split("\n"):
            l = l.strip()
            if not l:
                continue
            if l.endswith(":") or l.startswith("."):
                self.lines.append(l)
            else:
                self.lines.append("    " + l)
    def c(self, s):
        self.lines.append("    ; " + s)
    def label(self, base="L"):
        self.nlabel += 1
        return f"{base}_{self.nlabel}"
    def text(self):
        return "\n".join(self.lines) + "\n"

def v(a, n=1):
    return f"v{a}" if n == 1 else f"v[{a}:{a+n-1}]"
def a_(a, n=1):
    return f"a{a}" if n == 1 else f"a[{a}:{a+n-1}]"
def s(a, n=1):
    return f"s{a}" if n == 1 else f"s[{a}:{a+n-1}]"

def srd(A, d, base, nbytes):
    A(f"s_mov_b32 s{d}, s{base}")
    A(f"s_and_b32 s{d+1}, s{base+1}, 0xffff")
    A(f"s_mov_b32 s{d+2}, {nbytes}")
    A(f"s_mov_b32 s{d+3}, 0x00020000")

def kernel_begin(A, name):
    A(f".globl {name}")
    A(".p2align 8")
    A(f".type {name},@function")
    A(f"{name}:")

def kernel_desc(name, nvgpr, nsgpr, accum):
    return f""".amdhsa_kernel {name}
  .amdhsa_next_free_vgpr {nvgpr}
  .amdhsa_next_free_sgpr {nsgpr}
  .amdhsa_accum_offset {accum}
  .amdhsa_group_segment_fixed_size 0
  .amdhsa_kernarg_size 96
  .amdhsa_user_sgpr_count 2
  .amdhsa_user_sgpr_kernarg_segment_ptr 1
  .amdhsa_system_sgpr_workgroup_id_x 1
.end_amdhsa_kernel
"""

def stamp(A, slot, nslots, kidx, ws_srd, tmp_s, tmp_v, enabled):
    if not enabled:
        return
    A(f"s_memrealtime s[{tmp_s}:{tmp_s+1}]")
    A(f"s_memtime s[{tmp_s+2}:{tmp_s+3}]")
    A(f"s_lshl_b32 s{tmp_s+4}, s2, 10")
    A(f"s_add_u32 s{tmp_s+4}, s{tmp_s+4}, {WS_STAMP + kidx * 0x40000 + slot * 8}")
    A(f"v_lshrrev_b32 v{tmp_v}, 6, v0")
    A(f"v_lshlrev_b32 v{tmp_v}, 6, v{tmp_v}")
    A("s_waitcnt lgkmcnt(0)")
    A(f"v_mov_b32 v{tmp_v+2}, s{tmp_s}")
    A(f"v_mov_b32 v{tmp_v+3}, s{tmp_s+2}")
    A(f"buffer_store_dwordx2 v[{tmp_v+2}:{tmp_v+3}], v{tmp_v}, s[{ws_srd}:{ws_srd+3}], s{tmp_s+4} offen")
```

```python
import sys
from common import *
from k1 import gen_k1
from k2 import gen_k2
from k3 import gen_k3

def build(stamps=False):
    A = Asm()
    ks = [gen_k1(A, stamps), gen_k2(A, stamps), gen_k3(A, stamps)]
    hdr = open("cdna_kernels/" + NAME + ".s.ref").read().split("\n")
    hdr = [l for l in hdr if l.startswith(";") and "@launch" not in l and "Override launch" not in l and "grid=ceil" not in l]
    out = "\n".join(hdr) + "\n"
    out += "\n".join(k[2] for k in ks) + "\n"
    out += '.amdgcn_target "amdgcn-amd-amdhsa--gfx950"\n.text\n'
    out += A.text()
    out += '.section .rodata,"a"\n'
    for k in ks:
        out += ".p2align 6\n" + k[1]
    return out

if __name__ == "__main__":
    stamps = "--stamps" in sys.argv
    path = [a for a in sys.argv[1:] if not a.startswith("--")]
    path = path[0] if path else "cdna_kernels/" + NAME + ".s"
    open(path, "w").write(build(stamps))
    print("wrote", path)
```

```python
from common import *

K1_LDS = 163840
WREG = 10240
SLOT = 4 * WREG

S_X, S_W, S_E, S_WS, S_P0, S_P1 = 28, 32, 36, 40, 44, 48
sWAVE, sKIND, sB, sPT, sRS, sCB, sRD, sDM, sXO, sWO, sEO, sCNT, sWSTEP, sESTEP = range(52, 66)
sT0, sT1, sT2, sT3 = 66, 67, 68, 69
sSC = 70
sPO = [72, 73]
sPI = [74, 75]
sM = 76
sWV8 = 78
sEO0 = 79
LA = 1
ROT = 0
PF = 0
sST = 80
vLANE = 1
vXD, vWD, vED = 4, 8, 13
vXRB, vWRB, vERB = 14, 18, 19
vXR, vWR, vER = 20, 24, 25
BUF = [(28, 32), (56, 60)]
ACC = 84
vPP = 180
vPA = [196, 197]
vG = 198
vT = 200

def dma_chunk(extra):
    L = []
    L.append(f"s_mov_b32 m0, s{sDM}")
    L.append("s_nop 0")
    for q in range(4):
        L.append(f"buffer_load_dwordx4 v{vXD+q}, s[{S_X}:{S_X+3}], s{sXO} offen offset:{1024*q} lds")
    L.append(f"s_add_u32 m0, s{sDM}, 4096")
    L.append(f"s_add_u32 s{sXO}, s{sXO}, 128")
    for q in range(4):
        L.append(f"buffer_load_dwordx4 v{vWD+q}, s[{S_W}:{S_W+3}], s{sWO} offen offset:{1024*q} lds")
    L.append(f"s_add_u32 m0, s{sDM}, 8192")
    L.append("s_nop 0")
    L.append(f"buffer_load_dwordx4 v{vWD+4}, s[{S_W}:{S_W+3}], s{sWO} offen lds")
    if extra:
        L.append(f"s_add_u32 m0, s{sDM}, 9216")
    L.append(f"s_add_u32 s{sWO}, s{sWO}, s{sWSTEP}")
    if extra:
        L.append(f"buffer_load_dwordx4 v{vED}, s[{S_E}:{S_E+3}], s{sEO} offen lds")
        L.append(f"s_add_u32 s{sEO}, s{sEO}, s{sESTEP}")
    L.append(f"s_cmp_ge_u32 s{sXO}, 1280")
    L.append(f"s_cselect_b32 s{sXO}, 0, s{sXO}")
    L.append(f"s_cselect_b32 s{sWO}, 0, s{sWO}")
    L.append(f"s_cselect_b32 s{sEO}, s{sEO0}, s{sEO}")
    L.append(f"s_add_u32 s{sDM}, s{sDM}, {SLOT}")
    L.append(f"s_cmp_ge_u32 s{sDM}, {4*SLOT}")
    L.append(f"s_cselect_b32 s{sT0}, {4*SLOT}, 0")
    L.append(f"s_sub_u32 s{sDM}, s{sDM}, s{sT0}")
    return L

def reads(step, buf, extra):
    xf, wf = BUF[buf]
    L = [f"ds_read_b128 {v(xf,4)}, v{vXR+step}"]
    for t in range(5):
        for hf in range(2):
            L.append(f"ds_read_b64_tr_b16 {v(wf+4*t+2*hf,2)}, v{vWR} offset:{step*WREG + 64*t + 1280*hf}")
    if extra in ("K", "V"):
        for hf in range(2):
            L.append(f"ds_read_b64_tr_b16 {v(wf+20+2*hf,2)}, v{vER} offset:{step*WREG + 160*hf}")
    elif extra == "G":
        L.append(f"ds_read_b128 {v(wf+20,4)}, v{vER} offset:{step*WREG}")
    return L

def mfmas(buf, trans, extra):
    xf, wf = BUF[buf]
    L = []
    for t in range(5):
        a, b = (wf+4*t, xf) if trans else (xf, wf+4*t)
        L.append([f"v_mfma_f32_32x32x16_bf16 {v(ACC+16*t,16)}, {v(a,4)}, {v(b,4)}, {v(ACC+16*t,16)}"])
    if extra == "K":
        L.append([f"v_mfma_f32_32x32x16_bf16 {v(ACC+80,16)}, {v(wf+20,4)}, {v(xf,4)}, {v(ACC+80,16)}"])
    elif extra == "V":
        L.append([f"v_mfma_f32_32x32x16_bf16 {v(ACC+80,16)}, {v(xf,4)}, {v(wf+20,4)}, {v(ACC+80,16)}"])
    elif extra == "G":
        L[4] = L[4] + [f"v_dot2c_f32_bf16 v{vG}, v{xf+r}, v{wf+20+r}" for r in range(4)]
    return L

def set_read_addrs(A, extra):
    for q in range(4):
        A(f"v_add_u32 v{vXR+q}, s{sRD}, v{vXRB+q}")
    A(f"v_add_u32 v{vWR}, s{sRD}, v{vWRB}")
    if extra:
        A(f"v_add_u32 v{vER}, s{sRD}, v{vERB}")

STAMPS = False
def main_loop(A, trans, extra, tag):
    if extra == "G":
        A(f"v_lshrrev_b32 v2, 5, v{vLANE}")
        A(f"v_lshlrev_b32 v2, 4, v2")
        A(f"v_add_u32 v{vERB}, 9216, v2")
        A(f"v_mov_b32 v{vG}, 0")
    nacc = 96 if extra in ("K", "V") else 80
    for r in range(nacc):
        A(f"v_mov_b32 v{ACC+r}, 0")
    A(f"s_mov_b32 s{sRD}, 0")
    set_read_addrs(A, extra)
    A("s_barrier")
    for l in reads(0, 0, extra):
        A(l)
    A(f"s_mov_b32 s{sCNT}, 0")
    A(".p2align 3")
    A(f"K1_LOOP_{tag}:")
    for step in range(4):
        M = mfmas(step & 1, trans, extra)
        R = reads((step+1) & 3, (step+1) & 1, extra)
        if STAMPS and step == 0: A("s_memtime s[86:87]"); A(f"s_mov_b32 m0, s{sCNT}")
        A("s_waitcnt lgkmcnt(0)")
        if STAMPS and step == 0: A(f"v_writelane_b32 v199, s86, m0")
        for l in M[0]: A(l)
        if step == 3:
            A(f"s_add_u32 s{sRD}, s{sRD}, {SLOT}")
            A(f"s_cmp_ge_u32 s{sRD}, {4*SLOT}")
            A(f"s_cselect_b32 s{sRD}, 0, s{sRD}")
            set_read_addrs(A, extra)
            A("s_barrier")
        per = (len(R) + 2) // 3
        groups = [R[0:per], R[per:2*per], R[2*per:]] + [[] for _ in range(len(M) - 3)]
        for l in groups[0]: A(l)
        for m in range(1, len(M)):
            for l in M[m]: A(l)
            for l in groups[m]: A(l)
    A(f"s_add_u32 s{sCNT}, s{sCNT}, 1")
    A(f"s_cmp_lt_u32 s{sCNT}, 10")
    A(f"s_cbranch_scc1 K1_LOOP_{tag}")
    A("s_waitcnt lgkmcnt(0)")
    A("s_nop 15")

def gen_k1(A, stamps=False):
    name = "k1_kernel"
    global STAMPS
    STAMPS = stamps
    kernel_begin(A, name)
    A("s_cmp_ge_u32 s2, 256")
    A("s_cbranch_scc1 K1_END")
    A("s_load_dwordx16 s[4:19], s[0:1], 0")
    A("s_load_dwordx8 s[20:27], s[0:1], 64")
    A(f"v_and_b32 v{vLANE}, 63, v0")
    A(f"v_lshrrev_b32 v2, 6, v0")
    A("s_and_b32 s3, s2, 7")
    A(f"v_readfirstlane_b32 s{sWV8}, v2")
    A(f"s_and_b32 s{sWAVE}, s{sWV8}, 3")
    A(f"s_and_b32 s{sB}, s3, 3")
    A(f"s_lshr_b32 s{sT0}, s3, 2")
    A(f"s_lshr_b32 s{sT1}, s2, 3")
    A(f"s_and_b32 s{sKIND}, s{sT1}, 3")
    A(f"s_lshr_b32 s{sT1}, s{sT1}, 2")
    A(f"s_lshl_b32 s{sT0}, s{sT0}, 3")
    A(f"s_add_u32 s{sT0}, s{sT0}, s{sT1}")
    A(f"s_lshl_b32 s{sPT}, s{sT0}, 2")
    A(f"s_add_u32 s{sPT}, s{sPT}, s{sWAVE}")
    A(f"s_cmp_eq_u32 s{sKIND}, 0")
    A(f"s_mov_b32 s{sRS}, 3840")
    A(f"s_cselect_b32 s{sRS}, 1280, s{sRS}")
    A(f"s_max_u32 s{sT0}, s{sKIND}, 1")
    A(f"s_sub_u32 s{sT0}, s{sT0}, 1")
    A(f"s_mul_i32 s{sT0}, s{sT0}, 1280")
    A(f"s_mul_i32 s{sCB}, s{sB}, 320")
    A(f"s_add_u32 s{sCB}, s{sCB}, s{sT0}")
    A(f"s_lshl_b32 s{sWSTEP}, s{sRS}, 6")
    A(f"s_mul_i32 s{sDM}, s{sWAVE}, {WREG}")
    A(f"s_cmp_lt_u32 s{sWV8}, 4")
    A("s_cbranch_scc1 K1_COMPUTE")
    A(f"s_lshr_b32 s{sT0}, s{sPT}, 1")
    A(f"s_lshl_b32 s{sT0}, s{sT0}, 6")
    A(f"s_and_b32 s{sT1}, s{sPT}, 1")
    A(f"s_add_u32 s{sT0}, s{sT0}, s{sT1}")
    A(f"s_mul_i32 s{sT0}, s{sT0}, 1280")
    A(f"v_lshrrev_b32 v2, 3, v{vLANE}")
    A(f"v_mul_u32_u24 v3, 2560, v2")
    A(f"v_add_u32 v3, s{sT0}, v3")
    A(f"v_lshrrev_b32 v2, 1, v2")
    A(f"v_and_b32 v{vT}, 7, v{vLANE}")
    A(f"v_xor_b32 v2, v2, v{vT}")
    A(f"v_lshlrev_b32 v2, 4, v2")
    A(f"v_xor_b32 v{vT}, 64, v2")
    A(f"v_add_u32 v{vXD}, v2, v3")
    A(f"v_add_u32 v{vXD+1}, v{vT}, v3")
    A(f"v_add_u32 v{vXD+2}, {2*19456}, v{vXD}")
    A(f"v_add_u32 v{vXD+3}, {3*19456}, v{vXD+1}")
    A(f"v_add_u32 v{vXD+1}, {19456}, v{vXD+1}")
    A(f"s_lshl_b32 s{sT0}, s{sWAVE}, 4")
    A(f"s_mul_i32 s{sT0}, s{sT0}, s{sRS}")
    A(f"s_add_u32 s{sT0}, s{sT0}, s{sCB}")
    WIMM = [0, 1024, 2048, 3072, 0]
    for q in range(5):
        A(f"v_add_u32 v2, {64*q}, v{vLANE}")
        A(f"v_mul_u32_u24 v3, 3277, v2")
        A(f"v_lshrrev_b32 v3, 16, v3")
        A(f"v_mul_u32_u24 v{vT}, 20, v3")
        A(f"v_sub_u32 v2, v2, v{vT}")
        A(f"v_mul_lo_u32 v3, v3, s{sRS}")
        A(f"v_lshl_add_u32 v3, v2, 4, v3")
        A(f"v_add_u32 v3, s{sT0}, v3")
        A(f"v_subrev_u32 v{vWD+q}, {WIMM[q]}, v3")
    A(f"v_lshlrev_b32 v{vED}, 4, v{vLANE}")
    A("s_waitcnt lgkmcnt(0)")
    srd(A, S_X, 4, 2048*1280)
    A(f"s_cmp_eq_u32 s{sKIND}, 0")
    A(f"s_cselect_b64 s[{S_W}:{S_W+1}], s[12:13], s[6:7]")
    A(f"s_mov_b32 s{S_W+2}, {640*3840}")
    A(f"s_cselect_b32 s{S_W+2}, {640*1280}, s{S_W+2}")
    A(f"s_and_b32 s{S_W+1}, s{S_W+1}, 0xffff")
    A(f"s_mov_b32 s{S_W+3}, 0x00020000")
    A(f"s_cmp_eq_u32 s{sB}, 0")
    A(f"s_cselect_b64 s[{S_E}:{S_E+1}], s[14:15], s[16:17]")
    A(f"s_cmp_lt_u32 s{sB}, 2")
    A(f"s_cselect_b64 s[{S_E}:{S_E+1}], s[{S_E}:{S_E+1}], s[20:21]")
    A(f"s_mov_b32 s{S_E+2}, 1280")
    A(f"s_cselect_b32 s{S_E+2}, 25600, s{S_E+2}")
    A(f"s_mov_b32 s{sESTEP}, 128")
    A(f"s_cselect_b32 s{sESTEP}, 2560, s{sESTEP}")
    A(f"s_and_b32 s{S_E+1}, s{S_E+1}, 0xffff")
    A(f"s_mov_b32 s{S_E+3}, 0x00020000")
    A(f"s_cmp_eq_u32 s{sKIND}, 0")
    A(f"s_cselect_b32 s{S_E+2}, s{S_E+2}, 0")
    A(f"s_cmp_lt_u32 s{sB}, 3")
    A(f"s_cselect_b32 s{S_E+2}, s{S_E+2}, 0")
    A(f"s_lshr_b32 s{sEO}, s{sESTEP}, 2")
    A(f"s_mul_i32 s{sEO}, s{sEO}, s{sWAVE}")
    A(f"s_mov_b32 s{sXO}, 0")
    A(f"s_mov_b32 s{sWO}, 0")
    n = 10
    A(f"s_mov_b32 s{sEO0}, s{sEO}")
    if ROT:
        A(f"s_lshr_b32 s{sT0}, s{sPT}, 2")
        A(f"s_mul_i32 s{sT1}, s{sKIND}, 3")
        A(f"s_add_u32 s{sT0}, s{sT0}, s{sT1}")
        A(f"s_add_u32 s{sT0}, s{sT0}, s{sB}")
        A(f"s_mul_hi_u32 s{sT1}, s{sT0}, 429496730")
        A(f"s_mul_i32 s{sT1}, s{sT1}, 10")
        A(f"s_sub_u32 s{sT0}, s{sT0}, s{sT1}")
        A(f"s_lshl_b32 s{sXO}, s{sT0}, 7")
        A(f"s_mul_i32 s{sWO}, s{sT0}, s{sWSTEP}")
        A(f"s_mul_i32 s{sT1}, s{sT0}, s{sESTEP}")
        A(f"s_add_u32 s{sEO}, s{sEO}, s{sT1}")
    A(f"s_mov_b32 s{sCNT}, 0")
    A("K1_LD:")
    A(f"s_cmp_le_u32 s{sCNT}, {LA}")
    A("s_cbranch_scc1 K1_LD_A")
    A(f"s_waitcnt vmcnt({LA*n})")
    A("s_barrier")
    A("K1_LD_A:")
    for l in dma_chunk(True):
        A(l)
    A(f"s_add_u32 s{sCNT}, s{sCNT}, 1")
    A(f"s_cmp_lt_u32 s{sCNT}, 10")
    A("s_cbranch_scc1 K1_LD")
    srd(A, S_WS, 26, WS_SIZE)
    for k in range(LA, -1, -1):
        A(f"s_waitcnt vmcnt({k*n})")
        A("s_barrier")
    for k in range(2):
        SP = [S_P0, S_P1][k]
        A(f"s_lshl_b32 s{sT0}, s2, 2")
        A(f"s_add_u32 s{sT0}, s{sT0}, s{sWAVE}")
        if k: A(f"s_add_u32 s{sT0}, s{sT0}, 1024")
        A(f"s_lshl_b32 s{sPO[k]}, s{sT0}, 10")
        A(f"s_add_u32 s{sPO[k]}, s{sPO[k]}, {WS_WOP}")
        A(f"s_cmp_lt_u32 s{sT0}, 1600")
        A(f"s_cselect_b32 s{SP+2}, {640*1280}, 0")
        A(f"s_cselect_b32 s{sPO[k]}, s{sPO[k]}, {WS_SIZE}")
        A(f"s_mul_hi_u32 s{sT1}, s{sT0}, 53687092")
        A(f"s_mul_i32 s{sT2}, s{sT1}, 80")
        A(f"s_sub_u32 s{sT0}, s{sT0}, s{sT2}")
        A(f"s_mul_hi_u32 s{sT2}, s{sT0}, 858993460")
        A(f"s_mul_i32 s{sT3}, s{sT2}, 5")
        A(f"s_sub_u32 s{sT0}, s{sT0}, s{sT3}")
        A(f"s_cmp_lt_u32 s{sT2}, 8")
        A(f"s_cselect_b64 s[{SP}:{SP+1}], s[8:9], s[18:19]")
        A(f"s_and_b32 s{SP+1}, s{SP+1}, 0xffff")
        A(f"s_mov_b32 s{SP+3}, 0x00020000")
        A(f"s_and_b32 s{sT2}, s{sT2}, 7")
        A(f"s_mul_i32 s{sT2}, s{sT2}, 80")
        A(f"s_mul_i32 s{sT3}, s{sT0}, 20")
        A(f"s_cmp_lt_u32 s{sT0}, 4")
        A(f"s_cselect_b32 s{sT3}, s{sT3}, 16")
        A(f"s_mov_b32 s{sT0}, {20*1280}")
        A(f"s_cselect_b32 s{sT0}, {4*1280}, s{sT0}")
        A(f"s_mov_b32 s{sPI[k]}, {40*1280}")
        A(f"s_cselect_b32 s{sPI[k]}, {8*1280}, s{sPI[k]}")
        A(f"s_add_u32 s{sT2}, s{sT2}, s{sT3}")
        A(f"s_mul_i32 s{sT2}, s{sT2}, 1280")
        A(f"s_lshl_b32 s{sT1}, s{sT1}, 6")
        A(f"s_add_u32 s{sT2}, s{sT2}, s{sT1}")
        A(f"v_lshrrev_b32 v2, 5, v{vLANE}")
        A(f"v_mul_lo_u32 v2, v2, s{sT0}")
        A(f"v_and_b32 v3, 31, v{vLANE}")
        A(f"v_lshl_add_u32 v2, v3, 1, v2")
        A(f"v_add_u32 v{vPA[k]}, s{sT2}, v2")
        for i in range(8):
            so = "0" if i < 4 else f"s{sPI[k]}"
            A(f"buffer_load_ushort v{vPP+8*k+i}, v{vPA[k]}, s[{SP}:{SP+3}], {so} offen offset:{1280*(i%4)}")
    A("s_barrier")
    A("s_waitcnt vmcnt(0)")
    A(f"v_lshlrev_b32 v2, 4, v{vLANE}")
    for k in range(2):
        for r in range(4):
            A(f"v_lshl_or_b32 v{vT+4*k+r}, v{vPP+8*k+2*r+1}, 16, v{vPP+8*k+2*r}")
        A(f"buffer_store_dwordx4 {v(vT+4*k,4)}, v2, s[{S_WS}:{S_WS+3}], s{sPO[k]} offen")
    A("s_endpgm")
    A("K1_COMPUTE:")
    A(f"v_and_b32 v2, 31, v{vLANE}")
    A(f"v_lshrrev_b32 v3, 5, v{vLANE}")
    A(f"v_bfe_u32 v{vT}, v2, 1, 3")
    A(f"v_xor_b32 v3, v3, v{vT}")
    A(f"v_lshlrev_b32 v3, 4, v3")
    A(f"v_lshl_add_u32 v3, v2, 7, v3")
    for q in range(4):
        A(f"v_xor_b32 v{vT}, {q<<5}, v3")
        A(f"v_add_u32 v{vXRB+q}, s{sDM}, v{vT}")
    A(f"v_lshrrev_b32 v2, 5, v{vLANE}")
    A(f"v_bfe_u32 v3, v{vLANE}, 2, 2")
    A(f"v_lshl_add_u32 v2, v2, 3, v3")
    A(f"v_bfe_u32 v3, v{vLANE}, 4, 1")
    A(f"v_and_b32 v{vT}, 3, v{vLANE}")
    A(f"v_lshl_add_u32 v3, v3, 2, v{vT}")
    A(f"v_mul_u32_u24 v{vT}, 320, v2")
    A(f"v_lshl_add_u32 v{vWRB}, v3, 3, v{vT}")
    A(f"v_add_u32 v{vWRB}, 4096, v{vWRB}")
    A(f"v_min_u32 v3, 4, v3")
    A(f"v_mul_u32_u24 v{vT}, 40, v2")
    A(f"v_lshl_add_u32 v{vERB}, v3, 3, v{vT}")
    A(f"v_add_u32 v{vERB}, 9216, v{vERB}")
    A("s_waitcnt lgkmcnt(0)")
    srd(A, S_WS, 26, WS_SIZE)
    stamp(A, 0, 8, 0, S_WS, sST, vT, stamps)
    if PF:
        srd(A, S_X, 4, 2048*1280)
        A(f"s_cmp_eq_u32 s{sKIND}, 0")
        A(f"s_cselect_b64 s[{S_W}:{S_W+1}], s[12:13], s[6:7]")
        A(f"s_mov_b32 s{S_W+2}, {640*3840}")
        A(f"s_cselect_b32 s{S_W+2}, {640*1280}, s{S_W+2}")
        A(f"s_and_b32 s{S_W+1}, s{S_W+1}, 0xffff")
        A(f"s_mov_b32 s{S_W+3}, 0x00020000")
        A(f"s_lshr_b32 s{sT0}, s{sPT}, 2")
        A(f"s_lshl_b32 s{sT1}, s{sT0}, 7")
        A(f"s_lshl_b32 s{sT2}, s{sKIND}, 5")
        A(f"s_add_u32 s{sT1}, s{sT1}, s{sT2}")
        A(f"s_mul_i32 s{sT1}, s{sT1}, 1280")
        A(f"s_lshl_b32 s{sT2}, s{sWAVE}, 8")
        A(f"s_add_u32 s{sT1}, s{sT1}, s{sT2}")
        A(f"v_and_b32 v2, 31, v{vLANE}")
        A(f"v_mul_u32_u24 v2, 1280, v2")
        A(f"v_lshrrev_b32 v3, 5, v{vLANE}")
        A(f"v_lshl_add_u32 v4, v3, 7, v2")
        A(f"s_and_b32 s{sT0}, s{sT0}, 7")
        A(f"s_lshl_b32 s{sT0}, s{sT0}, 3")
        A(f"s_lshl_b32 s{sT2}, s{sWAVE}, 7")
        A(f"s_add_u32 s{sT0}, s{sT0}, s{sT2}")
        A(f"s_mul_i32 s{sT0}, s{sT0}, s{sRS}")
        A(f"s_add_u32 s{sT0}, s{sT0}, s{sCB}")
        A(f"v_bfe_u32 v2, v{vLANE}, 2, 3")
        A(f"v_lshl_add_u32 v2, v3, 6, v2")
        A(f"v_mul_lo_u32 v2, v2, s{sRS}")
        A(f"v_and_b32 v3, 3, v{vLANE}")
        A(f"v_mul_u32_u24 v3, 104, v3")
        A(f"v_add_u32 v5, v2, v3")
        A(f"buffer_load_dword v6, v4, s[{S_X}:{S_X+3}], s{sT1} offen")
        A(f"buffer_load_dword v7, v5, s[{S_W}:{S_W+3}], s{sT0} offen")
        A(f"s_cmp_lg_u32 s{sWAVE}, 0")
        A("s_cbranch_scc1 K1_PFD")
        A(f"s_lshl_b32 s{sT2}, s{sWSTEP}, 3")
        A(f"s_add_u32 s{sT0}, s{sT0}, s{sT2}")
        A(f"buffer_load_dword v6, v4, s[{S_X}:{S_X+3}], s{sT1} offen offset:1024")
        A(f"buffer_load_dword v7, v5, s[{S_W}:{S_W+3}], s{sT0} offen")
        A("K1_PFD:")
    A(f"s_cmp_eq_u32 s{sKIND}, 3")
    A("s_cbranch_scc1 K1_V_N")
    A(f"s_cmp_lg_u32 s{sKIND}, 0")
    A("s_cbranch_scc1 K1_V_T")
    A(f"s_cmp_eq_u32 s{sB}, 0")
    A("s_cbranch_scc1 K1_V_K")
    A(f"s_cmp_eq_u32 s{sB}, 1")
    A("s_cbranch_scc1 K1_V_V")
    A(f"s_cmp_eq_u32 s{sB}, 2")
    A("s_cbranch_scc1 K1_V_G")
    A("K1_V_T:")
    main_loop(A, True, None, "T")
    A("K1_EPI_T:")
    stamp(A, 1, 8, 0, S_WS, sST, vT, stamps)
    A(f"s_cmp_eq_u32 s{sKIND}, 2")
    A(f"s_cselect_b32 s{sSC}, 1.0, {hex(f32bits(CSCALE))}")
    A(f"s_mov_b32 s{sSC+1}, s{sSC}")
    A(f"v_and_b32 v2, 31, v{vLANE}")
    A(f"v_and_b32 v3, 0x13, v2")
    A(f"v_bfe_u32 v{vT}, v2, 2, 1")
    A(f"v_lshl_or_b32 v3, v{vT}, 3, v3")
    A(f"v_bfe_u32 v{vT}, v2, 3, 1")
    A(f"v_lshl_or_b32 v3, v{vT}, 2, v3")
    A(f"s_cselect_b64 s[{sM}:{sM+1}], -1, 0")
    A(f"v_cndmask_b32 v2, v2, v3, s[{sM}:{sM+1}]")
    A(f"v_cmp_gt_u32 vcc, 32, v{vLANE}")
    A(f"v_and_b32 v3, 32, v{vLANE}")
    A(f"v_add_u32 v3, v3, v2")
    A(f"v_lshlrev_b32 v4, 4, v3")
    A(f"v_lshlrev_b32 v{vT}, 3, v2")
    A(f"v_lshlrev_b32 v{vT+1}, 4, v2")
    A(f"v_add_u32 v{vT+2}, 2048, v{vT}")
    A(f"v_add_u32 v{vT+3}, 1024, v{vT+1}")
    A(f"v_cndmask_b32 v5, v{vT+3}, v{vT+2}, vcc")
    A(f"v_add_u32 v{vT+2}, 1536, v{vT+1}")
    A(f"v_add_u32 v{vT+3}, 1032, v{vT+1}")
    A(f"v_cndmask_b32 v6, v{vT+3}, v{vT+2}, vcc")
    A(f"v_add_u32 v{vT+2}, 1544, v{vT+1}")
    A(f"v_add_u32 v{vT+3}, 2304, v{vT}")
    A(f"v_cndmask_b32 v7, v{vT+3}, v{vT+2}, vcc")
    A(f"s_lshl_b32 s{sT0}, s{sPT}, 2")
    A(f"s_add_u32 s{sT0}, s{sT0}, s{sB}")
    A(f"s_mul_i32 s{sT0}, s{sT0}, 10240")
    A(f"s_mul_i32 s{sT1}, s{sKIND}, {WS_QA - WS_QB}")
    A(f"s_add_u32 s{sT0}, s{sT0}, s{sT1}")
    for p in range(4):
        for sidx in range(5*p, 5*p+5):
            r = ACC + 4*sidx
            A(f"v_pk_mul_f32 {v(r,2)}, {v(r,2)}, s[{sSC}:{sSC+1}]")
            A(f"v_pk_mul_f32 {v(r+2,2)}, {v(r+2,2)}, s[{sSC}:{sSC+1}]")
            A(f"v_cvt_pk_bf16_f32 v{28+2*sidx}, v{r}, v{r+1}")
            A(f"v_cvt_pk_bf16_f32 v{29+2*sidx}, v{r+2}, v{r+3}")
        b0 = 28 + 10*p
        A(f"buffer_store_dwordx4 {v(b0,4)}, v4, s[{S_WS}:{S_WS+3}], s{sT0} offen")
        A(f"buffer_store_dwordx2 {v(b0+4,2)}, v5, s[{S_WS}:{S_WS+3}], s{sT0} offen")
        A(f"buffer_store_dwordx2 {v(b0+6,2)}, v6, s[{S_WS}:{S_WS+3}], s{sT0} offen")
        A(f"buffer_store_dwordx2 {v(b0+8,2)}, v7, s[{S_WS}:{S_WS+3}], s{sT0} offen")
        if p < 3: A(f"s_add_u32 s{sT0}, s{sT0}, 2560")
    A("K1_FIN:")
    if stamps:
        A(f"s_lshl_b32 s{sT0}, s2, 10")
        A(f"s_add_u32 s{sT0}, s{sT0}, {WS_STAMP + 3*0x40000}")
        A(f"v_lshlrev_b32 v2, 2, v0")
        A(f"buffer_store_dword v199, v2, s[{S_WS}:{S_WS+3}], s{sT0} offen")
    stamp(A, 2, 8, 0, S_WS, sST, vT+8, stamps)
    A("K1_END:")
    A("s_endpgm")
    A("K1_V_N:")
    main_loop(A, False, None, "N")
    stamp(A, 1, 8, 0, S_WS, sST, vT, stamps)
    A(f"s_mul_i32 s{sT0}, s{sPT}, 40960")
    A(f"s_mul_i32 s{sT1}, s{sB}, 2560")
    A(f"s_add_u32 s{sT0}, s{sT0}, s{sT1}")
    A(f"s_add_u32 s{sT0}, s{sT0}, {WS_VA}")
    A(f"s_add_u32 s{sT1}, s{sT0}, 20480")
    A(f"v_lshrrev_b32 v2, 5, v{vLANE}")
    A(f"v_mul_u32_u24 v2, 10240, v2")
    A(f"v_and_b32 v3, 31, v{vLANE}")
    A(f"v_lshl_add_u32 v4, v3, 4, v2")
    for t in range(5):
        for G in range(2):
            r = ACC + 16*t + 8*G
            d = 28 + 8*t + 4*G
            for k in range(4):
                A(f"v_cvt_pk_bf16_f32 v{d+k}, v{r+2*k}, v{r+2*k+1}")
            A(f"buffer_store_dwordx4 {v(d,4)}, v4, s[{S_WS}:{S_WS+3}], s{[sT0,sT1][G]} offen offset:{512*t}")
    A("s_branch K1_FIN")
    A("K1_V_K:")
    main_loop(A, True, "K", "K")
    A(f"s_lshr_b32 s{sT0}, s{sPT}, 2")
    A(f"s_mul_i32 s{sT0}, s{sT0}, {SLAB}")
    A(f"s_add_u32 s{sT0}, s{sT0}, {WS_KVB}")
    A(f"s_lshl_b32 s{sT1}, s{sWAVE}, 10")
    A(f"s_add_u32 s{sT1}, s{sT1}, s{sT0}")
    A(f"s_lshl_b32 s{sT2}, s{sWAVE}, 8")
    A(f"s_add_u32 s{sT2}, s{sT2}, s{sT0}")
    A(f"s_add_u32 s{sT2}, s{sT2}, 12288")
    A(f"v_and_b32 v3, 0x33, v{vLANE}")
    A(f"v_bfe_u32 v{vT}, v{vLANE}, 2, 1")
    A(f"v_lshl_or_b32 v3, v{vT}, 3, v3")
    A(f"v_bfe_u32 v{vT}, v{vLANE}, 3, 1")
    A(f"v_lshl_or_b32 v3, v{vT}, 2, v3")
    A(f"v_lshlrev_b32 v4, 4, v3")
    A(f"v_lshlrev_b32 v5, 3, v3")
    r = ACC + 80
    for k in range(6):
        A(f"v_cvt_pk_bf16_f32 v{72+k}, v{r+2*k}, v{r+2*k+1}")
    A(f"buffer_store_dwordx4 v[72:75], v4, s[{S_WS}:{S_WS+3}], s{sT1} offen")
    A("s_mov_b32 exec_hi, 0")
    A(f"buffer_store_dwordx2 v[76:77], v5, s[{S_WS}:{S_WS+3}], s{sT2} offen")
    A("s_mov_b64 exec, -1")
    A("s_branch K1_EPI_T")
    A("K1_V_V:")
    main_loop(A, True, "V", "V")
    A(f"s_lshr_b32 s{sT0}, s{sPT}, 2")
    A(f"s_mul_i32 s{sT0}, s{sT0}, {SLAB}")
    A(f"s_add_u32 s{sT0}, s{sT0}, {WS_KVB + 4096}")
    A(f"s_lshl_b32 s{sT1}, s{sWAVE}, 11")
    A(f"s_add_u32 s{sT1}, s{sT1}, s{sT0}")
    A(f"v_lshlrev_b32 v4, 4, v{vLANE}")
    r = ACC + 80
    for k in range(8):
        A(f"v_cvt_pk_bf16_f32 v{72+k}, v{r+2*k}, v{r+2*k+1}")
    A("s_mov_b32 exec_lo, 0xfff00000")
    A("s_mov_b32 exec_hi, 0xfff00000")
    for k in range(8):
        A(f"v_mov_b32 v{72+k}, 0")
    A("s_mov_b32 exec_lo, 0x11000000")
    A("s_mov_b32 exec_hi, 0x11000000")
    for k in range(8):
        A(f"v_mov_b32 v{72+k}, 0x3f803f80")
    A("s_mov_b64 exec, -1")
    A(f"buffer_store_dwordx4 v[72:75], v4, s[{S_WS}:{S_WS+3}], s{sT1} offen")
    A(f"buffer_store_dwordx4 v[76:79], v4, s[{S_WS}:{S_WS+3}], s{sT1} offen offset:1024")
    A("s_branch K1_EPI_T")
    A("K1_V_G:")
    main_loop(A, True, "G", "G")
    A(f"v_mov_b32 v2, v{vG}")
    A("s_nop 1")
    A(f"v_permlane32_swap_b32 v2, v{vG}")
    A("s_nop 1")
    A(f"v_add_f32 v2, v2, v{vG}")
    A(f"v_mul_f32 v2, {hex(f32bits(-math.log2(math.e)))}, v2")
    A("v_exp_f32 v2, v2")
    A("s_nop 0")
    A("v_add_f32 v2, 1.0, v2")
    A("v_rcp_f32 v2, v2")
    A(f"s_lshl_b32 s{sT0}, s{sPT}, 7")
    A(f"s_add_u32 s{sT0}, s{sT0}, {WS_G}")
    A(f"v_lshlrev_b32 v4, 2, v{vLANE}")
    A("s_mov_b32 exec_hi, 0")
    A(f"buffer_store_dword v2, v4, s[{S_WS}:{S_WS+3}], s{sT0} offen")
    A("s_mov_b64 exec, -1")
    A("s_branch K1_EPI_T")
    return name, kernel_desc(name, 216, 96, 216), f"; @launch kernel={name} grid=(256,1,1) block=(512,1,1) lds={K1_LDS}"
```

```python
from common import *

K2_LDS = 163840
S_WS = 28
sWAVE, sP, sKH, sPT, sB, sPR, sG, sRND, sCUR, sNXT = range(32, 42)
sT0, sT1, sT2, sT3 = 42, 43, 44, 45
sQREC, sOREC = 46, 47
sM = 48
sST = 52
vLANE = 1
vL16, vL8 = 4, 5
vA16, vA8, vN16, vN8 = 6, 7, 8, 9
vIDX = 10
vGATE = 11
QA_, QB_, QT_ = 12, 16, 20
KM = [24, 28]; KT = [32, 34]; VV = [36, 44]
S = [64, 96]
NEGM = 128
OA, OB = 160, 176
vT = 192
LQ = 192
LKC = 204
LKP = 216
LV = 228

def PV(O, V, Sr):
    return f"v_smfmac_f32_32x32x32_bf16 {v(O,16)}, {v(V,4)}, {v(Sr,8)}, v{vIDX}"

def iteration(A, p, it):
    Sc, Sn = S[p], S[1-p]
    Km, Kt = KM[1-p], KT[1-p]
    KmL, KtL = KM[p], KT[p]
    V0, V1 = VV[p], VV[p]+4
    V1p = VV[1-p]+4
    VL = VV[1-p]
    E = lambda k: A(f"v_exp_f32 v{Sc+k}, v{Sc+k}")
    E(0); E(1)
    A(PV(OB, V1p, Sn+24))
    E(2); E(3); E(4)
    A("s_waitcnt lgkmcnt(0)")
    A(f"v_mfma_f32_32x32x4_2b_bf16 {v(Sn,32)}, {v(Kt,2)}, {v(QT_,2)}, {v(NEGM,32)}")
    tv, tk = it + 1, it + 2
    av = vA16 if tv < 4 else vN16
    ak, ak8 = (vA16, vA8) if tk < 4 else (vN16, vN8)
    A(f"ds_read_b128 {v(VL,4)}, v{av} offset:{4096 + (tv%4)*2048}")
    A(f"ds_read_b128 {v(VL+4,4)}, v{av} offset:{4096 + (tv%4)*2048 + 1024}")
    A(f"ds_read_b128 {v(KmL,4)}, v{ak} offset:{(tk%4)*1024}")
    A(f"ds_read_b64 {v(KtL,2)}, v{ak8} offset:{12288 + (tk%4)*256}")
    for k in range(5, 13): E(k)
    A(PV(OA, V0, Sc))
    for k in range(13, 18): E(k)
    A(PV(OA, V1, Sc+8))
    for k in range(18, 22): E(k)
    A(f"v_mfma_f32_32x32x16_bf16 {v(Sn,16)}, {v(Km,4)}, {v(QA_,4)}, {v(Sn,16)}")
    for k in range(22, 26): E(k)
    A(PV(OB, V0, Sc+16))
    for k in range(26, 29): E(k)
    A(f"v_mfma_f32_32x32x16_bf16 {v(Sn+16,16)}, {v(Km,4)}, {v(QB_,4)}, {v(Sn+16,16)}")
    for k in range(29, 32): E(k)

def dma_group(A, sg, sl):
    A(f"s_mov_b32 m0, s{sl}")
    A("s_nop 0")
    for q in range(4):
        A(f"buffer_load_dwordx4 v{vL16}, s[{S_WS}:{S_WS+3}], s{sg} offen offset:{1024*q} lds")

def rowmax(A, regs, dst, tmp):
    A(f"v_max3_f32 v{dst}, v{regs[0]}, v{regs[1]}, v{regs[2]}")
    i = 3
    while i + 1 < len(regs):
        A(f"v_max3_f32 v{dst}, v{dst}, v{regs[i]}, v{regs[i+1]}")
        i += 2
    if i < len(regs):
        A(f"v_max_f32 v{dst}, v{dst}, v{regs[i]}")
    A(f"v_mov_b32 v{tmp}, v{dst}")
    A("s_nop 1")
    A(f"v_permlane32_swap_b32 v{tmp}, v{dst}")
    A("s_nop 1")
    A(f"v_max_f32 v{dst}, v{dst}, v{tmp}")

def store_head(A, O, scale, pk, hsel_s, orec_s, tmp):
    for k in range(12):
        A(f"v_mul_f32 v{O+k}, v{scale}, v{O+k}")
    for k in range(6):
        A(f"v_cvt_pk_bf16_f32 v{pk+k}, v{O+2*k}, v{O+2*k+1}")
    A(f"buffer_store_dwordx4 {v(pk,4)}, v{vL16}, s[{S_WS}:{S_WS+3}], s{sT2} offen")
    A("s_mov_b32 exec_hi, 0")
    A(f"buffer_store_dwordx2 {v(pk+4,2)}, v{vL16}, s[{S_WS}:{S_WS+3}], s{sT3} offen")
    A("s_mov_b32 exec_hi, -1")

def gen_k2(A, stamps=False):
    name = "k2_kernel"
    kernel_begin(A, name)
    A("s_cmp_ge_u32 s2, 256")
    A("s_cbranch_scc1 K2_END")
    A("s_load_dwordx2 s[26:27], s[0:1], 88")
    A(f"v_and_b32 v{vLANE}, 63, v0")
    A("v_lshrrev_b32 v2, 6, v0")
    A("s_and_b32 s3, s2, 7")
    A(f"v_readfirstlane_b32 s{sWAVE}, v2")
    A(f"s_and_b32 s{sB}, s3, 3")
    A(f"s_lshr_b32 s{sT0}, s3, 2")
    A(f"s_lshl_b32 s{sT0}, s{sT0}, 5")
    A(f"s_lshr_b32 s{sPT}, s2, 3")
    A(f"s_add_u32 s{sPT}, s{sPT}, s{sT0}")
    A(f"s_and_b32 s{sP}, s{sWAVE}, 3")
    A(f"s_lshr_b32 s{sKH}, s{sWAVE}, 2")
    A(f"s_lshl_b32 s{sPR}, s{sB}, 2")
    A(f"s_add_u32 s{sPR}, s{sPR}, s{sP}")
    A(f"s_lshl_b32 s{sT0}, s{sPT}, 4")
    A(f"s_add_u32 s{sT0}, s{sT0}, s{sPR}")
    A(f"s_mul_i32 s{sQREC}, s{sT0}, 2560")
    A(f"s_lshl_b32 s{sT0}, s{sPT}, 4")
    A(f"s_lshr_b32 s{sT1}, s{sPR}, 1")
    A(f"s_add_u32 s{sT0}, s{sT0}, s{sT1}")
    A(f"s_mul_i32 s{sOREC}, s{sT0}, 5120")
    A(f"s_add_u32 s{sOREC}, s{sOREC}, {WS_OF}")
    A(f"v_lshlrev_b32 v{vL16}, 4, v{vLANE}")
    A(f"v_and_b32 v2, 31, v{vLANE}")
    A(f"v_lshlrev_b32 v{vL8}, 3, v2")
    A(f"v_lshlrev_b32 v3, 3, v{vLANE}")
    A(f"v_lshlrev_b32 v2, 2, v2")
    A(f"v_mov_b32 v{vIDX}, 0xdddd")
    A(f"s_lshl_b32 s{sT1}, s{sWAVE}, 12")
    A(f"s_add_u32 s{sT0}, s{sT1}, {WS_KVB}")
    A(f"s_lshl_b32 s{sG}, s{sPT}, 7")
    A(f"s_add_u32 s{sG}, s{sG}, {WS_G}")
    A("s_waitcnt lgkmcnt(0)")
    srd(A, S_WS, 26, WS_SIZE)
    stamp(A, 0, 8, 1, S_WS, sST, vT, stamps)
    A(f"buffer_load_dwordx4 {v(QA_,4)}, v{vL16}, s[{S_WS}:{S_WS+3}], s{sQREC} offen")
    A(f"buffer_load_dwordx4 {v(QB_,4)}, v{vL16}, s[{S_WS}:{S_WS+3}], s{sQREC} offen offset:1024")
    A(f"buffer_load_dwordx2 {v(QT_,2)}, v3, s[{S_WS}:{S_WS+3}], s{sQREC} offen offset:2048")
    A(f"s_mov_b32 s{sT2}, {WS_KVB}")
    A(f"s_mov_b32 s{sT3}, {WS_KVB + 12288}")
    A(f"buffer_load_dwordx4 {v(KM[0],4)}, v{vL16}, s[{S_WS}:{S_WS+3}], s{sT2} offen")
    A(f"buffer_load_dwordx2 {v(KT[0],2)}, v{vL8}, s[{S_WS}:{S_WS+3}], s{sT3} offen")
    A(f"buffer_load_dword v{vGATE}, v2, s[{S_WS}:{S_WS+3}], s{sG} offen")
    for g in range(2):
        dma_group(A, sT0, sT1)
        A(f"s_add_u32 s{sT0}, s{sT0}, 32768")
        A(f"s_add_u32 s{sT1}, s{sT1}, 32768")
    A(f"s_cmp_eq_u32 s{sKH}, 0")
    A("s_cbranch_scc1 K2_NOLOC1")
    A(f"s_add_u32 s{sT2}, s{sQREC}, {WS_QA}")
    A(f"buffer_load_dwordx4 {v(LQ,4)}, v{vL16}, s[{S_WS}:{S_WS+3}], s{sT2} offen")
    A(f"buffer_load_dwordx4 {v(LQ+4,4)}, v{vL16}, s[{S_WS}:{S_WS+3}], s{sT2} offen offset:1024")
    A(f"buffer_load_dwordx2 {v(LQ+8,2)}, v3, s[{S_WS}:{S_WS+3}], s{sT2} offen offset:2048")
    A(f"s_add_u32 s{sT2}, s{sQREC}, {WS_KA}")
    A(f"buffer_load_dwordx4 {v(LKC,4)}, v{vL16}, s[{S_WS}:{S_WS+3}], s{sT2} offen")
    A(f"buffer_load_dwordx4 {v(LKC+4,4)}, v{vL16}, s[{S_WS}:{S_WS+3}], s{sT2} offen offset:1024")
    A(f"buffer_load_dwordx2 {v(LKC+8,2)}, v3, s[{S_WS}:{S_WS+3}], s{sT2} offen offset:2048")
    A(f"s_cmp_ge_u32 s{sPT}, 2")
    A(f"s_cselect_b32 s{sT3}, {2*16*2560}, 0")
    A(f"s_sub_u32 s{sT2}, s{sT2}, s{sT3}")
    A(f"buffer_load_dwordx4 {v(LKP,4)}, v{vL16}, s[{S_WS}:{S_WS+3}], s{sT2} offen")
    A(f"buffer_load_dwordx4 {v(LKP+4,4)}, v{vL16}, s[{S_WS}:{S_WS+3}], s{sT2} offen offset:1024")
    A(f"buffer_load_dwordx2 {v(LKP+8,2)}, v3, s[{S_WS}:{S_WS+3}], s{sT2} offen offset:2048")
    A(f"v_lshrrev_b32 v2, 5, v{vLANE}")
    A(f"v_mul_u32_u24 v2, 10240, v2")
    A(f"v_and_b32 v3, 31, v{vLANE}")
    A(f"v_min_u32 v3, 19, v3")
    A(f"v_lshl_add_u32 v2, v3, 4, v2")
    A(f"s_mul_i32 s{sT2}, s{sPT}, 40960")
    A(f"s_mul_i32 s{sM}, s{sPR}, 640")
    A(f"s_add_u32 s{sT2}, s{sT2}, s{sM}")
    A(f"s_add_u32 s{sT2}, s{sT2}, {WS_VA}")
    A(f"s_add_u32 s{sM}, s{sT2}, 20480")
    A(f"s_sub_u32 s{sT3}, s{sM}, s{sT3}")
    for hd in range(2):
        A(f"buffer_load_dwordx4 {v(LV+12*hd,4)}, v2, s[{S_WS}:{S_WS+3}], s{sT2} offen offset:{320*hd}")
        A(f"buffer_load_dwordx4 {v(LV+12*hd+4,4)}, v2, s[{S_WS}:{S_WS+3}], s{sM} offen offset:{320*hd}")
        A(f"buffer_load_dwordx4 {v(LV+12*hd+8,4)}, v2, s[{S_WS}:{S_WS+3}], s{sT3} offen offset:{320*hd}")
    A("K2_NOLOC1:")
    for g in range(3):
        dma_group(A, sT0, sT1)
        if g < 2:
            A(f"s_add_u32 s{sT0}, s{sT0}, 32768")
            A(f"s_add_u32 s{sT1}, s{sT1}, 32768")
    A(f"s_cmp_eq_u32 s{sKH}, 0")
    A("s_cbranch_scc1 K2_NOLOC2")
    A(f"v_and_b32 v2, 31, v{vLANE}")
    A(f"v_lshrrev_b32 v3, 5, v{vLANE}")
    A(f"v_lshlrev_b32 v3, 3, v3")
    A(f"v_sub_u32 v2, v2, v3")
    A(f"v_mov_b32 v3, 0xff800000")
    A(f"s_cmp_ge_u32 s{sPT}, 2")
    A(f"s_cselect_b32 s{sT2}, 8, 0")
    for R in range(16):
        g, r = R // 4, R % 4
        kc = 16*(g >> 1) + 4*(g & 1) + r
        A(f"v_subrev_u32 v{S[0]}, {kc}, v2")
        A(f"v_cmp_gt_u32 vcc, 8, v{S[0]}")
        if R >= 8:
            A(f"v_add_u32 v{S[0]+1}, {32-kc}, v2")
            A(f"v_cmp_gt_u32 s[{sM}:{sM+1}], s{sT2}, v{S[0]+1}")
        else:
            A("s_nop 1")
        A(f"v_cndmask_b32 v{NEGM+R}, v3, 0, vcc")
        if R >= 8:
            A("s_nop 0")
            A(f"v_cndmask_b32 v{NEGM+16+R}, v3, 0, s[{sM}:{sM+1}]")
        else:
            A(f"v_mov_b32 v{NEGM+16+R}, v3")
    for r in range(32):
        A(f"v_mov_b32 v{OA+r}, 0")
    A("s_waitcnt vmcnt(12)")
    A("s_mov_b32 exec_lo, 0x11000000")
    A("s_mov_b32 exec_hi, 0x11000000")
    for r in range(24):
        A(f"v_mov_b32 v{LV+r}, 0x3f803f80")
    A("s_mov_b64 exec, -1")
    Sc, Sp = S[0], S[1]
    A(f"v_mfma_f32_32x32x16_bf16 {v(Sc,16)}, {v(LKC,4)}, {v(LQ,4)}, {v(NEGM,16)}")
    A(f"v_mfma_f32_32x32x16_bf16 {v(Sc+16,16)}, {v(LKC+4,4)}, {v(LQ+4,4)}, {v(NEGM,16)}")
    A(f"v_mfma_f32_32x32x16_bf16 {v(Sp,16)}, {v(LKP,4)}, {v(LQ,4)}, {v(NEGM+16,16)}")
    A(f"v_mfma_f32_32x32x16_bf16 {v(Sp+16,16)}, {v(LKP+4,4)}, {v(LQ+4,4)}, {v(NEGM+16,16)}")
    A("s_nop 7")
    A(f"v_mfma_f32_32x32x4_2b_bf16 {v(Sc,32)}, {v(LKC+8,2)}, {v(LQ+8,2)}, {v(Sc,32)}")
    A("s_nop 7")
    A(f"v_mfma_f32_32x32x4_2b_bf16 {v(Sp,32)}, {v(LKP+8,2)}, {v(LQ+8,2)}, {v(Sp,32)}")
    A("s_nop 15")
    A("s_nop 7")
    for hd in range(2):
        regs = [Sc+16*hd+k for k in range(16)] + [Sp+16*hd+8+k for k in range(8)]
        rowmax(A, regs, 2, 3)
        for r in regs:
            A(f"v_sub_f32 v{r}, v{r}, v2")
        for r in regs:
            A(f"v_exp_f32 v{r}, v{r}")
        A("s_nop 1")
        O = [OA, OB][hd]
        A(PV(O, LV+12*hd, Sc+16*hd))
        A(PV(O, LV+12*hd+4, Sc+16*hd+8))
        A(PV(O, LV+12*hd+8, Sp+16*hd+8))
    A("s_nop 15")
    for hd in range(2):
        O = [OA, OB][hd]
        A(f"v_rcp_f32 v2, v{O+12}")
        A(f"s_and_b32 s{sT3}, s{sPR}, 1")
        A(f"s_lshl_b32 s{sT2}, s{sT3}, 11")
        A(f"s_add_u32 s{sT2}, s{sT2}, s{sOREC}")
        if hd: A(f"s_add_u32 s{sT2}, s{sT2}, 1024")
        A(f"s_lshl_b32 s{sT3}, s{sT3}, 3")
        A(f"s_add_u32 s{sT3}, s{sT3}, s{sOREC}")
        A(f"s_add_u32 s{sT3}, s{sT3}, {4096 + 512*hd}")
        A(f"v_mul_f32 v2, v2, v{vGATE}")
        store_head(A, O, 2, LQ + 6*hd, None, None, None)
    A("K2_NOLOC2:")
    A("s_waitcnt vmcnt(12)")
    Sc = S[0]
    A(f"v_mfma_f32_32x32x4_2b_bf16 {v(Sc,32)}, {v(KT[0],2)}, {v(QT_,2)}, 0")
    for r in range(32):
        A(f"v_mov_b32 v{OA+r}, 0")
    A(f"v_mfma_f32_32x32x16_bf16 {v(Sc,16)}, {v(KM[0],4)}, {v(QA_,4)}, {v(Sc,16)}")
    A(f"v_mfma_f32_32x32x16_bf16 {v(Sc+16,16)}, {v(KM[0],4)}, {v(QB_,4)}, {v(Sc+16,16)}")
    A(f"s_mul_i32 s{sCUR}, s{sKH}, {SLAB}")
    A(f"s_add_u32 s{sNXT}, s{sCUR}, {2*SLAB}")
    A(f"v_add_u32 v{vA16}, s{sCUR}, v{vL16}")
    A(f"v_add_u32 v{vA8}, s{sCUR}, v{vL8}")
    A(f"v_add_u32 v{vN16}, s{sNXT}, v{vL16}")
    A(f"v_add_u32 v{vN8}, s{sNXT}, v{vL8}")
    for r in range(8):
        A(f"v_mov_b32 v{S[1]+24+r}, 0")
    for r in range(4):
        A(f"v_mov_b32 v{VV[1]+4+r}, 0")
    A("s_barrier")
    A(f"ds_read_b128 {v(KM[0],4)}, v{vA16}")
    A(f"ds_read_b64 {v(KT[0],2)}, v{vA8} offset:12288")
    A(f"ds_read_b128 {v(KM[1],4)}, v{vA16} offset:1024")
    A(f"ds_read_b64 {v(KT[1],2)}, v{vA8} offset:{12288+256}")
    A(f"ds_read_b128 {v(VV[0],4)}, v{vA16} offset:4096")
    A(f"ds_read_b128 {v(VV[0]+4,4)}, v{vA16} offset:5120")
    for hd in range(2):
        rowmax(A, [Sc+16*hd+k for k in range(16)], 2, 3)
        A(f"v_sub_f32 v{NEGM+16*hd}, 0, v2")
        for r in range(1, 16):
            A(f"v_mov_b32 v{NEGM+16*hd+r}, v{NEGM+16*hd}")
    A("s_waitcnt lgkmcnt(0)")
    A("s_nop 0")
    A(f"v_mfma_f32_32x32x4_2b_bf16 {v(Sc,32)}, {v(KT[0],2)}, {v(QT_,2)}, {v(NEGM,32)}")
    A("s_nop 15")
    A("s_nop 1")
    A(f"v_mfma_f32_32x32x16_bf16 {v(Sc,16)}, {v(KM[0],4)}, {v(QA_,4)}, {v(Sc,16)}")
    A(f"v_mfma_f32_32x32x16_bf16 {v(Sc+16,16)}, {v(KM[0],4)}, {v(QB_,4)}, {v(Sc+16,16)}")
    A(f"s_mov_b32 s{sRND}, 0")
    A("s_nop 11")
    stamp(A, 1, 8, 1, S_WS, sST, vT, stamps)
    A(".p2align 3")
    A("K2_LOOP:")
    for it in range(4):
        iteration(A, it & 1, it)
    A(f"s_add_u32 s{sRND}, s{sRND}, 1")
    A(f"s_cmp_eq_u32 s{sRND}, 8")
    A("s_cbranch_scc1 K2_DONE")
    A(f"s_add_u32 s{sNXT}, s{sNXT}, {2*SLAB}")
    A(f"s_cmp_ge_u32 s{sNXT}, {12*SLAB}")
    A(f"s_cselect_b32 s{sT0}, {12*SLAB}, 0")
    A(f"s_sub_u32 s{sNXT}, s{sNXT}, s{sT0}")
    A(f"v_mov_b32 v{vA16}, v{vN16}")
    A(f"v_mov_b32 v{vA8}, v{vN8}")
    A(f"v_add_u32 v{vN16}, s{sNXT}, v{vL16}")
    A(f"v_add_u32 v{vN8}, s{sNXT}, v{vL8}")
    A(f"s_bitcmp1_b32 s{sRND}, 0")
    A("s_cbranch_scc0 K2_LOOP")
    A(f"s_cmp_eq_u32 s{sRND}, 7")
    A("s_cbranch_scc1 K2_LOOP")
    A(f"s_cmp_eq_u32 s{sRND}, 1")
    A("s_cbranch_scc0 K2_B23")
    A("s_waitcnt vmcnt(4)")
    A("s_barrier")
    A("s_branch K2_LOOP")
    A("K2_B23:")
    A("s_waitcnt vmcnt(0)")
    A("s_barrier")
    A(f"s_cmp_eq_u32 s{sRND}, 3")
    A("s_cbranch_scc0 K2_LOOP")
    A(f"s_lshl_b32 s{sT1}, s{sWAVE}, 12")
    A(f"s_add_u32 s{sT0}, s{sT1}, {WS_KVB + 12*SLAB}")
    dma_group(A, sT0, sT1)
    A(f"s_cmp_ge_u32 s{sWAVE}, 5")
    A("s_cbranch_scc1 K2_LOOP")
    A(f"s_add_u32 s{sT0}, s{sT0}, 32768")
    A(f"s_add_u32 s{sT1}, s{sT1}, 32768")
    dma_group(A, sT0, sT1)
    A("s_branch K2_LOOP")
    A("K2_DONE:")
    A("s_nop 1")
    A(PV(OB, VV[1]+4, S[1]+24))
    stamp(A, 2, 8, 1, S_WS, sST, vT, stamps)
    A(f"s_lshl_b32 s{sT0}, s{sWAVE}, 12")
    A(f"s_add_u32 s{sT0}, s{sT0}, {4*SLAB}")
    A(f"s_xor_b32 s{sT1}, s{sWAVE}, 4")
    A(f"s_lshl_b32 s{sT1}, s{sT1}, 12")
    A(f"s_add_u32 s{sT1}, s{sT1}, {4*SLAB}")
    A(f"v_add_u32 v2, s{sT0}, v{vL16}")
    A(f"v_add_u32 v3, s{sT1}, v{vL16}")
    A("s_waitcnt lgkmcnt(0)")
    A("s_nop 7")
    A(f"s_cmp_eq_u32 s{sKH}, 0")
    A("s_cbranch_scc1 K2_X0")
    for k in range(4):
        A(f"ds_write_b128 v2, {v(OA+4*k,4)} offset:{1024*k}")
    A("s_waitcnt lgkmcnt(0)")
    for r in range(13):
        A(f"v_mov_b32 v{OA+r}, v{OB+r}")
    A("s_branch K2_X1")
    A("K2_X0:")
    for k in range(4):
        A(f"ds_write_b128 v2, {v(OB+4*k,4)} offset:{1024*k}")
    A("K2_X1:")
    A("s_waitcnt lgkmcnt(0)")
    A("s_barrier")
    for k in range(4):
        A(f"ds_read_b128 {v(OB+4*k,4)}, v3 offset:{1024*k}")
    A(f"s_and_b32 s{sT3}, s{sPR}, 1")
    A(f"s_lshl_b32 s{sT2}, s{sT3}, 1")
    A(f"s_add_u32 s{sT2}, s{sT2}, s{sKH}")
    A(f"s_lshl_b32 s{sT2}, s{sT2}, 10")
    A(f"s_add_u32 s{sOREC}, s{sOREC}, {8*5120}")
    A(f"s_add_u32 s{sT2}, s{sT2}, s{sOREC}")
    A(f"s_lshl_b32 s{sT3}, s{sT3}, 3")
    A(f"s_lshl_b32 s{sT0}, s{sKH}, 9")
    A(f"s_add_u32 s{sT3}, s{sT3}, s{sT0}")
    A(f"s_add_u32 s{sT3}, s{sT3}, s{sOREC}")
    A(f"s_add_u32 s{sT3}, s{sT3}, 4096")
    A(f"v_sub_f32 v{vGATE}, 1.0, v{vGATE}")
    A("s_waitcnt lgkmcnt(0)")
    for r in range(13):
        A(f"v_add_f32 v{OA+r}, v{OA+r}, v{OB+r}")
    A(f"v_mul_f32 v2, 0x1f800000, v{OA+12}")
    for r in range(12):
        A(f"v_fma_f32 v2, v{OA+r}, 0, v2")
    A("v_cmp_ngt_f32 vcc, 1.0, v2")
    A("s_nop 4")
    A("s_cbranch_vccnz K2_FALLBACK")
    A("K2_FINAL:")
    A(f"v_rcp_f32 v2, v{OA+12}")
    A("s_nop 0")
    A(f"v_mul_f32 v2, v2, v{vGATE}")
    store_head(A, OA, 2, vT, None, None, None)
    stamp(A, 3, 8, 1, S_WS, sST, vT+8, stamps)
    A("K2_END:")
    A("s_endpgm")
    A("K2_FALLBACK:")
    A(f"s_cmp_eq_u32 s{sKH}, 0")
    A("s_cbranch_scc1 K2_FB0")
    for r in range(4):
        A(f"v_mov_b32 v{QA_+r}, v{QB_+r}")
    A(f"v_mov_b32 v2, v{QT_}")
    A(f"v_mov_b32 v3, v{QT_+1}")
    A("s_nop 1")
    A(f"v_permlane32_swap_b32 v2, v{QT_}")
    A(f"v_permlane32_swap_b32 v3, v{QT_+1}")
    A("K2_FB0:")
    A(f"v_mov_b32 v{vT}, 0xff800000")
    for r in range(16):
        A(f"v_mov_b32 v{OA+r}, 0")
    A(f"s_mov_b32 s{sRND}, 0")
    A("K2_FB_PASS:")
    A(f"s_mov_b32 s{sCUR}, 0")
    A("K2_FB_TILE:")
    A(f"s_lshr_b32 s{sT0}, s{sCUR}, 2")
    A(f"s_mul_i32 s{sT0}, s{sT0}, {SLAB}")
    A(f"s_add_u32 s{sT0}, s{sT0}, {WS_KVB}")
    A(f"s_and_b32 s{sT1}, s{sCUR}, 3")
    A(f"s_lshl_b32 s{sM}, s{sT1}, 10")
    A(f"s_add_u32 s{sM}, s{sM}, s{sT0}")
    A(f"buffer_load_dwordx4 {v(KM[0],4)}, v{vL16}, s[{S_WS}:{S_WS+3}], s{sM} offen")
    A(f"s_lshl_b32 s{sM}, s{sT1}, 8")
    A(f"s_add_u32 s{sM}, s{sM}, s{sT0}")
    A(f"s_add_u32 s{sM}, s{sM}, 12288")
    A(f"buffer_load_dwordx2 {v(KT[0],2)}, v{vL8}, s[{S_WS}:{S_WS+3}], s{sM} offen")
    A(f"s_lshl_b32 s{sM}, s{sT1}, 11")
    A(f"s_add_u32 s{sM}, s{sM}, s{sT0}")
    A(f"s_add_u32 s{sM}, s{sM}, 4096")
    A(f"buffer_load_dwordx4 {v(VV[0],4)}, v{vL16}, s[{S_WS}:{S_WS+3}], s{sM} offen")
    A(f"buffer_load_dwordx4 {v(VV[0]+4,4)}, v{vL16}, s[{S_WS}:{S_WS+3}], s{sM} offen offset:1024")
    A("s_waitcnt vmcnt(0)")
    A(f"v_mfma_f32_32x32x4_2b_bf16 {v(S[0],32)}, {v(KT[0],2)}, {v(QT_,2)}, 0")
    A("s_nop 15")
    A("s_nop 3")
    A(f"v_mfma_f32_32x32x16_bf16 {v(S[0],16)}, {v(KM[0],4)}, {v(QA_,4)}, {v(S[0],16)}")
    A("s_nop 15")
    A(f"s_cmp_eq_u32 s{sRND}, 0")
    A("s_cbranch_scc0 K2_FB_P2")
    for k in range(8):
        A(f"v_max3_f32 v{vT}, v{vT}, v{S[0]+2*k}, v{S[0]+2*k+1}")
    A("s_branch K2_FB_NEXT")
    A("K2_FB_P2:")
    for k in range(16):
        A(f"v_sub_f32 v{S[0]+k}, v{S[0]+k}, v{vT}")
    for k in range(16):
        A(f"v_exp_f32 v{S[0]+k}, v{S[0]+k}")
    A("s_nop 1")
    A(PV(OA, VV[0], S[0]))
    A(PV(OA, VV[0]+4, S[0]+8))
    A("s_nop 15")
    A("K2_FB_NEXT:")
    A(f"s_add_u32 s{sCUR}, s{sCUR}, 1")
    A(f"s_cmp_lt_u32 s{sCUR}, 64")
    A("s_cbranch_scc1 K2_FB_TILE")
    A(f"s_cmp_eq_u32 s{sRND}, 1")
    A("s_cbranch_scc1 K2_FINAL")
    A(f"v_mov_b32 v2, v{vT}")
    A("s_nop 1")
    A(f"v_permlane32_swap_b32 v2, v{vT}")
    A("s_nop 1")
    A(f"v_max_f32 v{vT}, v{vT}, v2")
    A(f"s_mov_b32 s{sRND}, 1")
    A("s_branch K2_FB_PASS")
    return name, kernel_desc(name, 256, 96, 256), f"; @launch kernel={name} grid=(256,1,1) block=(512,1,1) lds={K2_LDS}"
```

```python
from common import *

RSTR = 336
PART = 64 * RSTR
K3_LDS = 4 * PART
S_WS, S_OUT = 28, 32
sWAVE, sT, sCB = 36, 37, 38
sO0, sO1, sW0, sW1, sW2 = 39, 40, 41, 42, 43
sT0, sT1, sT2 = 44, 45, 46
sST = 52
vLANE = 1
vL16, vH16 = 4, 5
ACC = 8
vT = 104
DEPTH = 12

def loads(A, ks):
    b = (ks % DEPTH) * 20
    off = (ks % 4) * 1024
    A(f"buffer_load_dwordx4 {a_(b,4)}, v{vL16}, s[{S_WS}:{S_WS+3}], s{sO0} offen offset:{off}")
    A(f"buffer_load_dwordx4 {a_(b+4,4)}, v{vL16}, s[{S_WS}:{S_WS+3}], s{sO1} offen offset:{off}")
    A(f"buffer_load_dwordx4 {a_(b+8,4)}, v{vL16}, s[{S_WS}:{S_WS+3}], s{sW0} offen offset:{off}")
    A(f"buffer_load_dwordx4 {a_(b+12,4)}, v{vL16}, s[{S_WS}:{S_WS+3}], s{sW1} offen offset:{off}")
    A(f"buffer_load_dwordx4 {a_(b+16,4)}, v{vH16}, s[{S_WS}:{S_WS+3}], s{sW2} offen offset:{off}")
    if ks % 4 == 3:
        for r in (sO0, sO1, sW0, sW1, sW2):
            A(f"s_add_u32 s{r}, s{r}, 4096")

def gen_k3(A, stamps=False):
    name = "k3_kernel"
    kernel_begin(A, name)
    A("s_cmp_ge_u32 s2, 256")
    A("s_cbranch_scc1 K3_END")
    A("s_load_dwordx2 s[22:23], s[0:1], 72")
    A("s_load_dwordx2 s[26:27], s[0:1], 88")
    A(f"v_and_b32 v{vLANE}, 63, v0")
    A("v_lshrrev_b32 v2, 6, v0")
    A("s_and_b32 s3, s2, 7")
    A(f"v_readfirstlane_b32 s{sWAVE}, v2")
    A(f"s_lshr_b32 s{sT0}, s3, 1")
    A(f"s_lshl_b32 s{sT0}, s{sT0}, 3")
    A(f"s_lshr_b32 s{sT1}, s2, 5")
    A(f"s_add_u32 s{sT}, s{sT0}, s{sT1}")
    A(f"s_and_b32 s{sT0}, s3, 1")
    A(f"s_lshl_b32 s{sT0}, s{sT0}, 2")
    A(f"s_bfe_u32 s{sT1}, s2, 0x20003")
    A(f"s_add_u32 s{sCB}, s{sT0}, s{sT1}")
    A(f"s_lshl_b32 s{sT0}, s{sT}, 5")
    A(f"s_lshl_b32 s{sT1}, s{sWAVE}, 2")
    A(f"s_add_u32 s{sT0}, s{sT0}, s{sT1}")
    A(f"s_mul_i32 s{sO0}, s{sT0}, 5120")
    A(f"s_add_u32 s{sO0}, s{sO0}, {WS_OF}")
    A(f"s_add_u32 s{sO1}, s{sO0}, {16*5120}")
    A(f"s_lshr_b32 s{sT0}, s{sCB}, 1")
    A(f"s_mul_i32 s{sT0}, s{sT0}, 5")
    A(f"s_and_b32 s{sT1}, s{sCB}, 1")
    A(f"s_mul_i32 s{sT2}, s{sT1}, 3")
    A(f"s_add_u32 s{sT2}, s{sT2}, s{sT0}")
    A(f"s_mul_i32 s{sW0}, s{sT2}, {80*1024}")
    A(f"s_mul_i32 s{sT2}, s{sWAVE}, {20*1024}")
    A(f"s_add_u32 s{sT2}, s{sT2}, {WS_WOP}")
    A(f"s_add_u32 s{sW0}, s{sW0}, s{sT2}")
    A(f"s_add_u32 s{sW1}, s{sW0}, {80*1024}")
    A(f"s_add_u32 s{sT0}, s{sT0}, 2")
    A(f"s_mul_i32 s{sW2}, s{sT0}, {80*1024}")
    A(f"s_add_u32 s{sW2}, s{sW2}, s{sT2}")
    A(f"s_lshl_b32 s{sT1}, s{sT1}, 8")
    A(f"s_add_u32 s{sW2}, s{sW2}, s{sT1}")
    A(f"v_lshlrev_b32 v{vL16}, 4, v{vLANE}")
    A(f"v_and_b32 v{vH16}, 0x2f0, v{vL16}")
    A("s_waitcnt lgkmcnt(0)")
    srd(A, S_WS, 26, WS_SIZE)
    stamp(A, 0, 8, 2, S_WS, sST, vT, stamps)
    for ks in range(DEPTH):
        loads(A, ks)
    srd(A, S_OUT, 22, 2048*1280)
    for ks in range(20):
        b = (ks % DEPTH) * 20
        outstanding = min(DEPTH, 20 - ks) - 1
        A(f"s_waitcnt vmcnt({5*outstanding})")
        for e in range(2):
            for t in range(3):
                acc = ACC + 16*(3*e+t)
                c = "0" if ks == 0 else v(acc, 16)
                A(f"v_mfma_f32_32x32x16_bf16 {v(acc,16)}, {a_(b+8+4*t,4)}, {a_(b+4*e,4)}, {c}")
        if ks + DEPTH < 20:
            loads(A, ks + DEPTH)
    stamp(A, 1, 8, 2, S_WS, sST, vT, stamps)
    A(f"s_and_b32 s{sT1}, s{sCB}, 1")
    A(f"s_lshl_b32 s{sT0}, s{sT1}, 6")
    A(f"s_xor_b32 s{sT1}, s{sT1}, 1")
    A(f"s_lshl_b32 s{sT1}, s{sT1}, 8")
    A(f"s_mul_i32 s{sT2}, s{sWAVE}, {PART}")
    A(f"s_add_u32 s{sT0}, s{sT0}, s{sT2}")
    A(f"s_add_u32 s{sT1}, s{sT1}, s{sT2}")
    A(f"v_and_b32 v2, 31, v{vLANE}")
    A(f"v_mul_u32_u24 v2, {RSTR}, v2")
    A(f"v_lshrrev_b32 v3, 5, v{vLANE}")
    A(f"v_lshl_add_u32 v2, v3, 4, v2")
    A(f"v_add_u32 v3, s{sT1}, v2")
    A(f"v_add_u32 v2, s{sT0}, v2")
    A("s_nop 7")
    for e in range(2):
        for t in range(3):
            acc = ACC + 16*(3*e+t)
            for g in range(4 if t < 2 else 2):
                if t < 2:
                    A(f"ds_write_b128 v2, {v(acc+4*g,4)} offset:{e*32*RSTR + t*128 + g*32}")
                else:
                    A(f"ds_write_b128 v3, {v(acc+4*g,4)} offset:{e*32*RSTR + g*32}")
    for j in range(3):
        A(f"v_add_u32 v2, {256*j}, v0")
        A(f"v_mul_u32_u24 v3, 6554, v2")
        A(f"v_lshrrev_b32 v3, 16, v3")
        A(f"v_mul_u32_u24 v{vT+8}, 10, v3")
        A(f"v_sub_u32 v2, v2, v{vT+8}")
        A(f"v_mul_u32_u24 v{vT+8}, {RSTR}, v3")
        A(f"v_lshl_add_u32 v{vT+j}, v2, 5, v{vT+8}")
        A(f"v_and_b32 v{vT+8}, 31, v3")
        A(f"v_lshrrev_b32 v3, 5, v3")
        A(f"v_lshl_add_u32 v3, v{vT+8}, 1, v3")
        A(f"v_mul_u32_u24 v3, 1280, v3")
        A(f"v_lshl_add_u32 v{vT+4+j}, v2, 4, v3")
    A(f"s_mul_i32 s{sT0}, s{sT}, {64*1280}")
    A(f"s_mul_i32 s{sT1}, s{sCB}, 160")
    A(f"s_add_u32 s{sT0}, s{sT0}, s{sT1}")
    A("s_waitcnt lgkmcnt(0)")
    A("s_barrier")
    for j in range(3):
        if j == 2:
            A(f"s_cmp_ge_u32 s{sWAVE}, 2")
            A("s_cbranch_scc1 K3_FIN")
        base = ACC + 32*j
        for w in range(4):
            A(f"ds_read_b128 {v(base+8*w,4)}, v{vT+j} offset:{w*PART}")
            A(f"ds_read_b128 {v(base+8*w+4,4)}, v{vT+j} offset:{w*PART+16}")
        A("s_waitcnt lgkmcnt(0)")
        for k in range(0, 8, 2):
            A(f"v_pk_add_f32 {v(base+k,2)}, {v(base+k,2)}, {v(base+8+k,2)}")
            A(f"v_pk_add_f32 {v(base+16+k,2)}, {v(base+16+k,2)}, {v(base+24+k,2)}")
        for k in range(0, 8, 2):
            A(f"v_pk_add_f32 {v(base+k,2)}, {v(base+k,2)}, {v(base+16+k,2)}")
        for k in range(4):
            A(f"v_cvt_pk_bf16_f32 v{base+8+k}, v{base+2*k}, v{base+2*k+1}")
        A(f"buffer_store_dwordx4 {v(base+8,4)}, v{vT+4+j}, s[{S_OUT}:{S_OUT+3}], s{sT0} offen")
    A("K3_FIN:")
    stamp(A, 2, 8, 2, S_WS, sST, vT+10, stamps)
    A("K3_END:")
    A("s_endpgm")
    return name, kernel_desc(name, 128 + 240, 96, 128), f"; @launch kernel={name} grid=(256,1,1) block=(256,1,1) lds={K3_LDS}"
```

```python
import sys, k1, gen
k1.LA = 1; k1.ROT = 1; k1.PF = 0
good = gen.build(False)
open("m_good.s", "w").write(good)
bad = good
for k in ("K1", "K2", "K3"):
    bad = bad.replace(f"    s_cbranch_scc1 {k}_END\n", f"    s_cbranch_scc1 {k}_END\n    s_and_b32 s3, s2, 31\n    s_lshl_b32 s3, s3, 3\n    s_lshr_b32 s2, s2, 5\n    s_or_b32 s2, s2, s3\n", 1)
open("m_bad.s", "w").write(bad)
```
